```python
import torch

def _softmax(x, axis=-1):
    return torch.softmax(x, dim=axis)
def _gelu(x):
    return torch.nn.functional.gelu(x, approximate="tanh")
def _silu(x):
    return torch.nn.functional.silu(x)
def _sigmoid(x):
    return torch.sigmoid(x)
def _layernorm(x, axis=-1, eps=1e-5):
    m = x.mean(dim=axis, keepdim=True)
    v = x.var(dim=axis, keepdim=True, unbiased=False)
    return (x - m) / torch.sqrt(v + eps)
def _scatter_add(tgt, idx, src, axis=0):
    return tgt.clone().index_add_(axis, idx, src)
def _segment_sum(src, seg, n):
    out = torch.zeros((n,) + src.shape[1:], dtype=src.dtype)
    return out.index_add_(0, seg, src)
def _pad(x, pw):
    flat = tuple(v for pair in reversed(pw) for v in pair)
    return torch.nn.functional.pad(x, flat)

kernel_name = 'gated_mix__sliding_local_dilated__mixer_s_mlp__prompt'

def setup_inputs():

    _w = (lambda a: (lambda t: t.to(torch.bfloat16) if t.is_floating_point() else t)(torch.as_tensor(a)))
    def _A_setup():
        B, S, D = 1, 2048, 576
        return {
            "x": _w((lambda *s: torch.randn(*s, dtype=torch.bfloat16) * 0.05)(B, S, D)),
            "wqkv": _w((lambda *s: torch.randn(*s, dtype=torch.bfloat16) * 1.6)(D, 3 * D)),
            "wo": _w((lambda *s: torch.randn(*s, dtype=torch.bfloat16) * 0.05)(D, D)),
        }
    _A_in = _A_setup()

    def _B_setup():
        B, S, D, F = 1, 2048, 576, 4608
        return {
            "x":  _w((lambda *s: torch.randn(*s, dtype=torch.bfloat16) * 0.05)(B, S, D)),
            "w1": _w((lambda *s: torch.randn(*s, dtype=torch.bfloat16) * 3.2)(D, D) * (D ** -0.5)),
            "w2": _w((lambda *s: torch.randn(*s, dtype=torch.bfloat16) * 3.2)(D, D) * (D ** -0.5)),
            "w3": _w((lambda *s: torch.randn(*s, dtype=torch.bfloat16) * 3.2)(D, F) * (D ** -0.5)),
            "w4": _w((lambda *s: torch.randn(*s, dtype=torch.bfloat16) * 3.2)(F, D) * (F ** -0.5)),
        }
    _B_in = _B_setup()

    return {
        "A_x": _A_in["x"],
        "A_wqkv": _A_in["wqkv"],
        "A_wo": _A_in["wo"],
        "B_x": _B_in["x"],
        "B_w1": _B_in["w1"],
        "B_w2": _B_in["w2"],
        "B_w3": _B_in["w3"],
        "B_w4": _B_in["w4"],
        "gate_w": _w((lambda *s: torch.randn(*s, dtype=torch.bfloat16) * 0.05)(576) * 16.0),
    }

def reference(A_x, A_wqkv, A_wo, B_x, B_w1, B_w2, B_w3, B_w4, gate_w):
    def _A_ref(x, wqkv, wo):
        B, S, D = x.shape
        H = 32; Dh = D // H
        W, dil = 8, 2
        qkv = (lambda x, *d: x.permute(*d))((x @ wqkv).reshape(B, S, 3, H, Dh), 2, 0, 3, 1, 4)
        q, k, v = qkv[0], qkv[1], qkv[2]
        scale = Dh ** -0.5
        pos = torch.arange(S)
        off = torch.arange(W) * dil
        idx = pos[:, None] - off[None, :]
        mask = idx >= 0
        idx_c = torch.where(mask, idx, 0).reshape(-1)
        kg = k[:, :, idx_c, :].reshape(B, H, S, W, Dh)
        vg = v[:, :, idx_c, :].reshape(B, H, S, W, Dh)
        logits = torch.einsum("bhsd,bhswd->bhsw", q, kg) * scale
        logits = torch.where(mask[None, None, :, :], logits, -1e9)
        attn = _softmax(logits, axis=-1)
        o = torch.einsum("bhsw,bhswd->bhsd", attn, vg)
        return (lambda x, *d: x.permute(*d))(o, 0, 2, 1, 3).reshape(B, S, D) @ wo

    def _B_ref(x, w1, w2, w3, w4):
        B, S, D = x.shape
        h = _gelu(_layernorm(x, axis=-1) @ w1)
        c = D // 4
        g0 = _pad(h[:, :, 0*c:1*c], ((0, 0), (1, 0), (0, 0)))[:, :S, :]
        g1 = _pad(h[:, :, 1*c:2*c], ((0, 0), (0, 1), (0, 0)))[:, 1:, :]
        g2 = _pad(h[:, :, 2*c:3*c], ((0, 0), (2, 0), (0, 0)))[:, :S, :]
        g3 = _pad(h[:, :, 3*c:   ], ((0, 0), (0, 2), (0, 0)))[:, 2:, :]
        hs = torch.concatenate([g0, g1, g2, g3], axis=-1) @ w2
        x1 = x + hs
        h2 = _gelu(_layernorm(x1, axis=-1) @ w3) @ w4
        return x1 + h2

    x = A_x
    g = _sigmoid((x * gate_w).sum(-1, keepdims=True))
    a = _A_ref(x, A_wqkv, A_wo)
    b = _B_ref(x, B_w1, B_w2, B_w3, B_w4)
    return g * a + (1 - g) * b
```

```python
import re

TRANS = ("v_exp_f32", "v_log_f32", "v_rcp_f32", "v_rsq_f32", "v_sqrt_f32", "v_sin_f32", "v_cos_f32")
RMW_VALU = ("v_fmac_f32", "v_dot2c_f32_bf16")


def regs_of(tok):
    tok = tok.strip()
    if tok.startswith("-"):
        tok = tok[1:]
    if tok.startswith("abs(") or tok.startswith("|"):
        tok = tok.replace("abs(", "").replace(")", "").replace("|", "")
    m = re.fullmatch(r"([vas])(\d+)", tok)
    if m:
        return {(m.group(1), int(m.group(2)))}
    m = re.fullmatch(r"([vas])\[(\d+):(\d+)\]", tok)
    if m:
        return {(m.group(1), k) for k in range(int(m.group(2)), int(m.group(3)) + 1)}
    if tok == "vcc":
        return {("s", "vcc")}
    if tok == "exec":
        return {("s", "exec")}
    if tok == "m0":
        return {("s", "m0")}
    return set()


class Ins:
    __slots__ = ("text", "op", "kind", "defs", "uses", "passes", "srcc", "ws", "data", "isdma", "ab")

    def __init__(self, text):
        self.text = text
        t = text.split(";")[0].strip()
        parts = t.split(None, 1)
        self.op = op = parts[0]
        rest = parts[1] if len(parts) > 1 else ""
        ops = [x.strip() for x in re.split(r",(?![^\[]*\])", rest)] if rest else []
        mods = ""
        if ops:
            last = ops[-1].split(None, 1)
            if len(last) > 1 and not op.startswith("s_waitcnt"):
                ops[-1] = last[0]
                mods = last[1]
        self.defs, self.uses = set(), set()
        self.passes = 0
        self.srcc = set()
        self.ab = set()
        self.data = set()
        self.isdma = False
        self.ws = 1
        R = [regs_of(o) for o in ops]
        if op.startswith("v_mfma"):
            self.kind = "mfma"
            self.passes = 8 if "32x32" in op else 4
            self.defs = R[0]
            self.ab = R[1] | R[2]
            self.srcc = R[3]
            self.uses = self.ab | self.srcc
        elif op.startswith("v_"):
            self.kind = "valu"
            if op.startswith("v_cmp"):
                self.defs = R[0]
                self.uses = set().union(*R[1:])
            elif op.startswith("v_permlane"):
                self.defs = R[0] | R[1]
                self.uses = R[0] | R[1]
            else:
                self.defs = R[0]
                self.uses = set().union(*R[1:]) if len(R) > 1 else set()
                base = op.replace("_e32", "").replace("_e64", "")
                if base in RMW_VALU or "dpp" in op:
                    self.uses |= R[0]
                if base.startswith("v_cndmask") and len(ops) == 3:
                    self.uses |= {("s", "vcc")}
                if base.startswith("v_add_co") or base.startswith("v_addc_co"):
                    self.defs |= R[1]
        elif op.startswith("ds_"):
            self.kind = "ds"
            if "read" in op or "bpermute" in op or "swizzle" in op:
                self.defs = R[0]
                self.uses = set().union(*R[1:])
            else:
                self.uses = set().union(*R)
                self.data = set().union(*R[1:])
        elif op.startswith("buffer_") or op.startswith("global_"):
            self.kind = "vmem"
            toks = mods.split()
            if "lds" in toks:
                self.isdma = True
                self.uses = set().union(*R) | {("s", "m0")}
            elif "load" in op:
                self.defs = R[0]
                self.uses = set().union(*R[1:])
            else:
                self.uses = set().union(*R)
                self.data = R[0] if op.startswith("buffer_") else R[1]
        elif op.startswith("s_waitcnt"):
            self.kind = "wait"
        elif op == "s_nop":
            self.kind = "nop"
            self.ws = int(ops[0]) + 1
        elif op.startswith("s_load") or op.startswith("s_memtime") or op.startswith("s_memrealtime"):
            self.kind = "smem"
            self.defs = R[0]
            self.uses = set().union(*R[1:]) if len(R) > 1 else set()
        elif op.startswith("s_"):
            self.kind = "salu"
            if op.startswith("s_cmp") or op.startswith("s_bitcmp") or op.startswith("s_cbranch") or op in (
                "s_branch", "s_barrier", "s_sleep", "s_endpgm", "s_setprio"):
                self.uses = set().union(*R) if R else set()
            else:
                self.defs = R[0]
                self.uses = set().union(*R[1:]) if len(R) > 1 else set()
                if "saveexec" in op:
                    self.defs |= {("s", "exec")}
        else:
            raise ValueError("unknown instruction: " + text)


class Asm:
    def __init__(self):
        self.lines = []
        self.hist = []
        self.vm = []
        self.lg = []
        self.sm = set()
        self.nid = 0
        self.nops = 0
        self.nop_sites = []
        self.count = 0
        self.tag = ""
        self.autowaits = 0

    def raw(self, s):
        self.lines.append(s)

    def label(self, name):
        self.lines.append(name + ":")

    def _emit_wait(self, vm=None, lg=None):
        parts = []
        if vm is not None:
            assert vm <= 63
            parts.append("vmcnt(%d)" % vm)
            del self.vm[: max(0, len(self.vm) - vm)]
        if lg is not None:
            assert lg <= 15
            parts.append("lgkmcnt(%d)" % lg)
            del self.lg[: max(0, len(self.lg) - lg)]
            if lg == 0:
                self.sm = set()
        self._push(Ins("s_waitcnt " + " ".join(parts)))

    def wait_vm(self, ident):
        for k, e in enumerate(self.vm):
            if e[0] == ident:
                n = len(self.vm) - 1 - k
                self._emit_wait(vm=min(n, 63))
                return True
        return False

    def wait_lg(self, ident):
        for k, e in enumerate(self.lg):
            if e[0] == ident:
                n = len(self.lg) - 1 - k
                assert not self.sm
                self._emit_wait(lg=min(n, 15))
                return True
        return False

    def wait_all(self, vm=True, lg=True):
        self._emit_wait(vm=0 if vm else None, lg=0 if lg else None)

    def _auto_wait(self, ins):
        touched = ins.defs | ins.uses
        need_vm = None
        for k, e in enumerate(self.vm):
            if e[1] & touched:
                need_vm = len(self.vm) - 1 - k
        need_lg = None
        for k, e in enumerate(self.lg):
            if e[1] & touched:
                need_lg = len(self.lg) - 1 - k
        if self.sm & touched:
            need_lg = 0
        if need_lg is not None and self.sm:
            need_lg = 0
        if need_vm is not None or need_lg is not None:
            self.autowaits += 1
            self._emit_wait(vm=None if need_vm is None else min(need_vm, 63),
                            lg=None if need_lg is None else min(need_lg, 15))

    def _need(self, ins):
        need = 0
        dist = 0
        vuse = {r for r in ins.uses if r[0] in "va"}
        vdef = {r for r in ins.defs if r[0] in "va"}
        suse = {r for r in ins.uses if r[0] == "s"}
        for p in reversed(self.hist):
            if dist >= 20:
                break
            req = 0
            pv = {r for r in p.defs if r[0] in "va"}
            ps = {r for r in p.defs if r[0] == "s"}
            if p.kind == "valu":
                if ins.kind == "mfma" and pv & vuse:
                    req = max(req, 2)
                if ins.op.startswith("v_permlane") and pv & vuse:
                    req = max(req, 2)
                if "dpp" in ins.op and pv & vuse:
                    req = max(req, 2)
                if (ins.op.startswith("v_readfirstlane") or ins.op.startswith("v_readlane")) and pv & vuse:
                    req = max(req, 1)
                if p.op.replace("_e32", "").replace("_e64", "") in TRANS and ins.kind in ("valu", "mfma") and pv & vuse:
                    req = max(req, 1)
                if p.op.startswith("v_dot") and ins.kind in ("valu", "mfma", "vmem", "ds") and pv & (vuse | vdef):
                    same = ins.op == p.op
                    if same:
                        toks = [x.strip() for x in ins.text.split(None, 1)[1].split(",")]
                        ab = regs_of(toks[1]) | regs_of(toks[2])
                        if pv & ab:
                            req = max(req, 3)
                    else:
                        req = max(req, 3)
                if ps & suse:
                    if ins.kind == "valu":
                        req = max(req, 2)
                    elif ins.kind == "vmem":
                        req = max(req, 5)
                    elif ins.kind in ("salu", "smem"):
                        req = max(req, 1)
            elif p.kind == "mfma":
                big = p.passes == 8
                if ins.kind == "mfma":
                    if pv & ins.ab:
                        req = max(req, 12 if big else 8)
                    if pv & ins.srcc:
                        if not (pv == ins.srcc and p.passes == ins.passes):
                            req = max(req, 10 if big else 6)
                    elif pv & ins.defs:
                        req = max(req, 10 if big else 6)
                elif ins.kind in ("valu", "vmem", "ds"):
                    if pv & (vuse | vdef):
                        req = max(req, 12 if big else 8)
                    if ins.kind == "valu" and p.srcc & vdef:
                        req = max(req, 7 if big else 3)
            elif p.kind == "salu":
                if ("s", "m0") in ps and ins.isdma:
                    req = max(req, 1)
            elif p.kind == "vmem":
                if p.data and ("x4" in p.op or "x3" in p.op) and p.data & vdef:
                    req = max(req, 2)
            need = max(need, req - dist)
            dist += p.ws
        return need

    def _push(self, ins):
        self.lines.append(ins.text)
        self.hist.append(ins)
        if len(self.hist) > 40:
            del self.hist[:10]
        self.count += 1

    def __call__(self, text):
        ident = None
        for line in text.split("\n"):
            line = line.strip()
            if not line:
                continue
            ins = Ins(line)
            if ins.kind == "wait":
                m = re.search(r"vmcnt\((\d+)\)", line)
                n = re.search(r"lgkmcnt\((\d+)\)", line)
                self._emit_wait(int(m.group(1)) if m else None, int(n.group(1)) if n else None)
                continue
            if ins.op == "s_endpgm" or ins.op == "s_barrier" or ins.op.startswith("s_cbranch") or ins.op == "s_branch":
                pass
            self._auto_wait(ins)
            if ins.kind == "ds" and len(self.lg) >= 15:
                self._emit_wait(lg=0 if self.sm else 14)
            if ins.kind == "vmem" and len(self.vm) >= 63:
                self._emit_wait(vm=62)
            need = self._need(ins)
            if need > 0:
                self.nops += need
                self.nop_sites.append((self.tag, need, line))
                while need > 0:
                    k = min(need, 16)
                    self._push(Ins("s_nop %d" % (k - 1)))
                    need -= k
            self._push(ins)
            if ins.kind == "vmem":
                self.nid += 1
                ident = self.nid
                self.vm.append([ident, set(ins.defs)])
                assert len(self.vm) <= 64, "too many vmem ops in flight"
            elif ins.kind == "ds":
                self.nid += 1
                ident = self.nid
                self.lg.append([ident, set(ins.defs)])
                if len(self.lg) > 15:
                    raise AssertionError("more than 15 LDS ops in flight: " + line)
            elif ins.kind == "smem":
                self.sm |= ins.defs
        return ident

    def flush_hazards(self):
        self._push(Ins("s_nop 7"))
        self._push(Ins("s_nop 7"))

    def snapshot(self):
        return ([list(e) for e in self.vm], [list(e) for e in self.lg], set(self.sm), list(self.hist))

    def restore(self, snap):
        self.vm = [list(e) for e in snap[0]]
        self.lg = [list(e) for e in snap[1]]
        self.sm = set(snap[2])
        self.hist = list(snap[3])

    def text(self):
        return "\n".join(self.lines) + "\n"


def descriptor(name, vgpr=512, sgpr=102, accum=256):
    return f""".section .rodata,"a"
.p2align 6
.amdhsa_kernel {name}
  .amdhsa_next_free_vgpr {vgpr}
  .amdhsa_next_free_sgpr {sgpr}
  .amdhsa_accum_offset {accum}
  .amdhsa_group_segment_fixed_size 0
  .amdhsa_kernarg_size 96
  .amdhsa_user_sgpr_count 2
  .amdhsa_user_sgpr_kernarg_segment_ptr 1
  .amdhsa_system_sgpr_workgroup_id_x 1
  .amdhsa_float_denorm_mode_32 3
.end_amdhsa_kernel
"""


def header(name, grid, block, lds):
    return f"""; @launch grid=({grid},1,1) block=({block},1,1) lds={lds}
.amdgcn_target "amdgcn-amd-amdhsa--gfx950"
.text
.globl {name}
.p2align 8
.type {name},@function
{name}:
"""
```

```python
import struct, sys
from asmlib import *

NAME = "gated_mix__sliding_local_dilated__mixer_s_mlp__prompt_kernel"
S, D, F = 2048, 576, 4608
WS_HS = 0x100000
WS_X1 = 0x400000
WS_O = 0x700000
WS_ST = 0xA00000
WS_G = 0xA20000
WS_PART = 0x1000000
WS_SIZE = WS_PART + 256 * 147456
LDS_BYTES = 163840
BIG = 0x40000000
SPIN_LIMIT = 1 << 18


def f32(x):
    return "0x%08x" % struct.unpack("<I", struct.pack("<f", x))[0]


LOG2E = 1.4426950408889634
GC1 = -2.0 * LOG2E * 0.7978845608028654
GC2 = GC1 * 0.044715

sWave, sI, sJ, sNonce = "s3", "s4", "s5", "s6"
sT0, sT1, sT2, sT3, sT4, sT5 = "s7", "s8", "s9", "s10", "s11", "s12"
sSub, sTh, sC = "s13", "s14", "s15"
X_, WQ_, W1_, W2_, W3_, W4_, WO_, OUT_, WS_, GT_, DBG_ = (
    "s[40:43]", "s[44:47]", "s[48:51]", "s[52:55]", "s[56:59]", "s[60:63]", "s[64:67]",
    "s[68:71]", "s[72:75]", "s[76:79]", "s[80:83]")
M0_, M1_, M2_, M3_, M4_ = "s[84:85]", "s[86:87]", "s[88:89]", "s[90:91]", "s[92:93]"
sA, sB, sCc, sD, sE, sF, sG, sH = ["s%d" % k for k in range(94, 102)]
sP = ["s%d" % k for k in range(16, 40)]


def vr(b, n=1):
    return "v%d" % b if n == 1 else "v[%d:%d]" % (b, b + n - 1)


def ar(b, n=1):
    return "a%d" % b if n == 1 else "a[%d:%d]" % (b, b + n - 1)


class Opt:
    mimic_hs = True
    stamps = False
    stop_after = None
    touch = True


class Gen(Asm):
    def __init__(self, opt):
        super().__init__()
        self.o = opt
        self.nlab = 0
        self.nstamp = 0

    def lab(self, p):
        self.nlab += 1
        return "L_%s_%d" % (p, self.nlab)

    def stamp(self, idx):
        if not self.o.stamps:
            return
        a = self
        a.wait_all(vm=False, lg=True)
        a("s_memrealtime s[34:35]")
        a("s_waitcnt lgkmcnt(0)")
        a("v_mov_b32 v254, s34\nv_mov_b32 v255, s35")
        a(f"s_lshl_b32 s36, s2, 8\ns_add_u32 s36, s36, {0x80000 + idx * 8}")
        a(f"buffer_store_dwordx2 v[254:255], {self.vFlag}, {WS_}, s36 offen")

    def bf16_round(self, dst, src):
        self(f"v_cvt_pk_bf16_f32 {dst}, {src}, {src}\nv_and_b32 {dst}, 0xffff0000, {dst}")

    def xgroup(self, op, r, tmp, both=True):
        a = self
        a(f"v_mov_b32 {tmp}, {r}\nv_permlane32_swap_b32 {r}, {tmp}\n{op} {r}, {r}, {tmp}")
        if both:
            a(f"v_mov_b32 {tmp}, {r}\nv_permlane16_swap_b32 {r}, {tmp}\n{op} {r}, {r}, {tmp}")

    def ln_scalars(self, vs, vq, t0, t1):
        a = self
        a(f"v_mul_f32 {vs}, {f32(1.0 / D)}, {vs}")
        a(f"v_mul_f32 {vq}, {f32(1.0 / D)}, {vq}")
        a(f"v_fma_f32 {vq}, -{vs}, {vs}, {vq}")
        a(f"v_max_f32 {vq}, 0, {vq}")
        self.bf16_round(t0, vs)
        self.bf16_round(t1, vq)
        a(f"v_add_f32 {t1}, {f32(1e-5)}, {t1}")
        self.bf16_round(t1, t1)
        a(f"v_sqrt_f32 {t1}, {t1}")
        self.bf16_round(t1, t1)
        a(f"v_rcp_f32 {vs}, {t1}")
        a(f"v_mul_f32 {vq}, {t0}, {vs}")
        a(f"v_sub_f32 {vq}, 0, {vq}")

    def norm_ops(self, src, dst, vr_, vnb, t0, t1):
        return [f"v_lshlrev_b32 {t0}, 16, {src}", f"v_and_b32 {t1}, 0xffff0000, {src}",
                f"v_fma_f32 {t0}, {t0}, {vr_}, {vnb}", f"v_fma_f32 {t1}, {t1}, {vr_}, {vnb}",
                f"v_cvt_pk_bf16_f32 {dst}, {t0}, {t1}"]

    def gelu_ops(self, srcs, dsts, tmp, vC1, vc=None):
        n = len(srcs)
        T = [vr(tmp + k) for k in range(n)]
        L = []
        L += [f"v_mul_f32 {T[k]}, {srcs[k]}, {srcs[k]}" for k in range(n)]
        L += [f"v_fmamk_f32 {T[k]}, {T[k]}, {f32(GC2)}, {vC1}" for k in range(n)]
        L += [f"v_mul_f32 {T[k]}, {srcs[k]}, {T[k]}" for k in range(n)]
        L += [f"v_exp_f32 {T[k]}, {T[k]}" for k in range(n)]
        if vc is None:
            L += [f"v_add_f32 {T[k]}, 1.0, {T[k]}" for k in range(n)]
        else:
            L += [f"v_fma_f32 {T[k]}, {T[k]}, {vc}, {vc}" for k in range(n)]
        L += [f"v_rcp_f32 {T[k]}, {T[k]}" for k in range(n)]
        L += [f"v_mul_f32 {T[k]}, {srcs[k]}, {T[k]}" for k in range(n)]
        L += [f"v_cvt_pk_bf16_f32 {dsts[k]}, {T[2 * k]}, {T[2 * k + 1]}" for k in range(n // 2)]
        return L

    def publish(self, soff_expr):
        a = self
        a.wait_all()
        a("s_barrier")
        a(soff_expr)
        a(f"v_mov_b32 v255, {sNonce}")
        a(f"buffer_store_dword v255, {self.vFlag}, {WS_}, {sT0} offen sc1")

    def poll(self, soff_expr, nflags, code, vt0, vt1):
        a = self
        skip, loop, done = self.lab("skip"), self.lab("poll"), self.lab("done")
        a(soff_expr)
        a(f"v_and_b32 {vt0}, {nflags - 1}, v0\nv_lshlrev_b32 {vt0}, 2, {vt0}")
        a.wait_all(vm=False, lg=True)
        a(f"s_cmp_lg_u32 {sWave}, 0\ns_cbranch_scc1 {skip}")
        snap = a.snapshot()
        a(f"s_mov_b32 {sT1}, 0")
        a.label(loop)
        a(f"buffer_load_dword {vt1}, {vt0}, {WS_}, {sT0} offen sc1")
        a("s_waitcnt vmcnt(0)")
        a(f"v_cmp_ne_u32 vcc, {sNonce}, {vt1}")
        a(f"s_cbranch_vccz {done}")
        a(f"s_add_u32 {sT1}, {sT1}, 1\ns_cmp_lt_u32 {sT1}, {SPIN_LIMIT}")
        a("s_sleep 1")
        a(f"s_cbranch_scc1 {loop}")
        a(f"v_mov_b32 {vt1}, {code}")
        a(f"buffer_store_dword {vt1}, {self.vFlag}, {DBG_}, 0 offen")
        a("s_waitcnt vmcnt(0)")
        a.label(done)
        a("s_nop 0")
        a.label(skip)
        a.restore(snap)
        a("s_barrier")

    def prologue(self):
        a = self
        a.tag = "pro"
        a("s_cmp_ge_u32 s2, 256\ns_cbranch_scc1 L_end")
        a("s_load_dwordx16 s[16:31], s[0:1], 0\ns_load_dwordx8 s[32:39], s[0:1], 64")
        a("v_lshrrev_b32 v1, 6, v0")
        a("v_mov_b32 v2, v0")
        a(f"v_readfirstlane_b32 {sWave}, v1")
        a("v_and_b32 v0, 63, v0")
        a(f"s_and_b32 {sT0}, s2, 7\ns_lshr_b32 {sT1}, s2, 3")
        a(f"s_lshr_b32 {sI}, {sT0}, 1\ns_lshl_b32 {sI}, {sI}, 2\ns_lshr_b32 {sT2}, {sT1}, 3\ns_add_u32 {sI}, {sI}, {sT2}")
        a(f"s_and_b32 {sT0}, {sT0}, 1\ns_and_b32 {sT1}, {sT1}, 7")
        a(f"s_lshl_b32 {sJ}, {sT0}, 3\ns_add_u32 {sJ}, {sJ}, {sT1}")
        a(f"s_lshl_b32 {sSub}, {sT0}, 2\ns_add_u32 {sSub}, {sSub}, {sT1}")
        a(f"s_lshr_b32 {sTh}, {sT1}, 1\ns_and_b32 {sTh}, {sTh}, 1")
        a(f"s_lshl_b32 {sC}, {sT0}, 1\ns_and_b32 {sT2}, {sT1}, 1\ns_add_u32 {sC}, {sC}, {sT2}")
        a(f"s_mov_b32 {sH}, {sT1}")
        self.vFlag = "v253"
        a(f"v_cmp_eq_u32 vcc, 0, v2\nv_mov_b32 v3, {BIG}\nv_cndmask_b32 {self.vFlag}, v3, 0, vcc" if False else
          f"v_cmp_eq_u32 vcc, 0, v2\nv_mov_b32 v3, {BIG}\nv_mov_b32 v4, 0\nv_cndmask_b32 {self.vFlag}, v3, v4, vcc")
        a("s_waitcnt lgkmcnt(0)")
        for srd, p, size in ((40, 16, S * D * 2), (44, 18, D * 3 * D * 2), (48, 24, D * D * 2), (52, 26, D * D * 2),
                             (56, 28, D * F * 2), (60, 30, D * F * 2), (64, 20, D * D * 2), (68, 34, S * D * 2),
                             (72, 38, WS_SIZE), (76, 32, D * 2), (80, 36, 256)):
            a(f"s_mov_b32 s{srd}, s{p}\ns_and_b32 s{srd + 1}, s{p + 1}, 0xffff\ns_mov_b32 s{srd + 2}, {size}\ns_mov_b32 s{srd + 3}, 0x20000")
        a(f"s_lshl_b32 {sT0}, {sI}, 12")
        a(f"s_load_dword {sNonce}, s[38:39], {sT0}")
        a(f"s_cmp_ge_u32 {sH}, 4\ns_cbranch_scc1 L_roleB")

    def finish_nonce(self):
        a = self
        a("s_waitcnt lgkmcnt(0)")
        a(f"s_mul_i32 {sNonce}, {sNonce}, 0x9E3779B1\ns_add_u32 {sNonce}, {sNonce}, 0x7F4A7C15")

    def swz(self, dst, n, c, t):
        a = self
        a(f"v_lshrrev_b32 {t}, 2, {n}\nv_sub_u32 {t}, 0, {t}\nv_and_b32 {t}, 3, {t}\nv_xor_b32 {t}, {c}, {t}\nv_lshlrev_b32 {dst}, 4, {t}")

    def role_b(self):
        a = self
        a.tag = "B0"
        vXo, vXr, vWo, vAr, vRes, vSt, vSt2, vStat, vL16 = 1, 2, 3, 12, 15, 16, 17, 18, 19
        T = 20
        XR, ACC, FR, RES, GT = 32, 104, 140, 172, 190
        vC1 = 206
        XST = 8 * 9216
        sI2, sRow, sWs, sHS = sP[0], sP[1], sP[2], sP[3]
        a(f"s_lshl_b32 {sI2}, {sI}, 1\ns_add_u32 {sI2}, {sI2}, {sTh}")
        a(f"s_lshl_b32 {sRow}, {sI2}, 2\ns_add_u32 {sRow}, {sRow}, {sWave}")
        a(f"s_mul_i32 {sHS}, {sRow}, 18432\ns_add_u32 {sHS}, {sHS}, {WS_HS}")
        a(f"s_lshl_b32 {sRow}, {sRow}, 4")
        a(f"s_lshr_b32 {sT0}, {sC}, 1\ns_add_u32 {sT0}, {sT0}, 1\ns_sub_u32 {sT1}, 0, {sT0}")
        a(f"s_bitcmp1_b32 {sC}, 0\ns_cselect_b32 {sT0}, {sT0}, {sT1}\ns_add_u32 {sT0}, {sT0}, {sRow}")
        a(f"v_lshrrev_b32 v{T}, 2, v0\nv_and_b32 v{T+1}, 3, v0")
        self.swz(f"v{T+2}", f"v{T}", f"v{T+1}", f"v{T+3}")
        a(f"v_add_u32 v{T}, {sT0}, v{T}\ns_movk_i32 {sT2}, 1152\nv_mul_lo_u32 v{T}, v{T}, {sT2}\nv_add_u32 v{vXo}, v{T}, v{T+2}")
        a(f"s_mul_i32 {sT3}, {sWave}, 18432\ns_add_u32 {sT3}, {sT3}, {XST}")
        xd = None
        for ks in range(18):
            a(f"s_add_u32 m0, {sT3}, {960 * ks}")
            a("s_nop 0")
            xd = a(f"buffer_load_dwordx4 v{vXo}, {X_}, 0 offen offset:{64 * ks} lds")
        for t in range(9):
            a(f"v_add_u32 v{T}, {64 * t}, v0\nv_mul_u32_u24 v{T+1}, 3641, v{T}\nv_lshrrev_b32 v{T+1}, 16, v{T+1}")
            a(f"v_mul_u32_u24 v{T+2}, 18, v{T+1}\nv_sub_u32 v{T}, v{T}, v{T+2}")
            a(f"v_bfe_u32 v{T+2}, v{T+1}, 2, 2\nv_lshlrev_b32 v{T+2}, 3, v{T+2}")
            a(f"v_lshrrev_b32 v{T+3}, 4, v{T+1}\nv_lshl_add_u32 v{T+2}, v{T+3}, 2, v{T+2}")
            a(f"v_and_b32 v{T+1}, 3, v{T+1}\nv_add_u32 v{T+1}, v{T+1}, v{T+2}")
            a(f"v_mul_u32_u24 v{T+1}, 1152, v{T+1}\nv_lshl_add_u32 v{T+1}, v{T}, 4, v{T+1}")
            a(f"v_subrev_u32 v{vWo+t}, {1024 * (t & 3)}, v{T+1}")
        a(f"s_mul_i32 {sWs}, {sWave}, 36864\ns_mul_i32 {sT0}, {sC}, 288\ns_add_u32 {sWs}, {sWs}, {sT0}")
        a(f"s_mul_i32 {sE}, {sWave}, 9216")
        rnd_last = {}

        def dma_round_ops(rho):
            def seq(srd, soff):
                L = [f"s_add_u32 {sF}, {sWs}, {soff}" if soff >= 0 else f"s_sub_u32 {sF}, {sWs}, {-soff}"]
                for t in range(9):
                    if t % 4 == 0:
                        L.append(f"s_add_u32 m0, {sE}, {(rho % 4) * 4 * 9216 + 1024 * t}")
                    L.append(f"buffer_load_dwordx4 v{vWo+t}, {srd}, {sF} offen offset:{1024 * (t & 3)} lds")
                return L
            if rho < 4:
                return seq(W1_, rho * 4 * 36864)
            if rho > 4:
                return seq(W2_, (rho * 4 - 18) * 36864)
            return None, seq(W1_, 16 * 36864), seq(W2_, -2 * 36864)

        def emit_round_now(rho):
            ops = dma_round_ops(rho)
            if isinstance(ops, tuple):
                l2, l3 = self.lab("w2"), self.lab("w2e")
                a(f"s_cmp_ge_u32 {sWave}, 2\ns_cbranch_scc1 {l2}")
                snap = a.snapshot()
                for s_ in ops[1]:
                    a(s_)
                a(f"s_branch {l3}")
                a.label(l2)
                a.restore(snap)
                for s_ in ops[2]:
                    last = a(s_)
                a.label(l3)
                rnd_last[rho] = last
            else:
                for s_ in ops:
                    r = a(s_)
                    if r:
                        rnd_last[rho] = r

        emit_round_now(0)
        emit_round_now(1)
        self.finish_nonce()
        a(f"v_and_b32 v{T}, 15, v0\nv_lshrrev_b32 v{T+1}, 4, v0")
        self.swz(f"v{T+2}", f"v{T}", f"v{T+1}", f"v{T+3}")
        a(f"v_lshl_add_u32 v{T+2}, v{T}, 6, v{T+2}\nv_add_u32 v{vXr}, {sT3}, v{T+2}")
        a(f"v_lshrrev_b32 v{T+2}, 2, v{T}\nv_lshl_add_u32 v{T+2}, v{T+1}, 2, v{T+2}\nv_mul_u32_u24 v{T+2}, 288, v{T+2}")
        a(f"v_and_b32 v{T+3}, 3, v0\nv_lshl_add_u32 v{vAr}, v{T+3}, 3, v{T+2}")
        a(f"v_add_u32 v{vAr+1}, {7 * 9216}, v{vAr}\nv_add_u32 v{vAr+2}, {14 * 9216}, v{vAr}")
        a(f"v_add_u32 v{T+2}, {sRow}, v{T}\nv_mul_u32_u24 v{T+2}, 1152, v{T+2}\nv_lshl_add_u32 v{T+2}, v{T+1}, 3, v{T+2}")
        a(f"s_mul_i32 {sT0}, {sC}, 288\nv_add_u32 v{vRes}, {sT0}, v{T+2}")
        a(f"v_lshrrev_b32 v{T+2}, 1, v{T+1}\nv_and_b32 v{T+3}, 1, v{T+1}")
        a(f"v_lshlrev_b32 v{T+4}, 4, v{T}\nv_lshl_add_u32 v{T+4}, v{T+3}, 3, v{T+4}")
        a(f"v_lshl_add_u32 v{vSt}, v{T+2}, 8, v{T+4}")
        a(f"s_and_b32 {sT0}, {sWave}, 1\ns_lshl_b32 {sT0}, {sT0}, 8")
        a(f"v_lshl_add_u32 v{vSt2}, v{T+2}, 9, v{T+4}\nv_add_u32 v{vSt2}, {sT0}, v{vSt2}")
        a(f"v_cmp_eq_u32 vcc, 0, v{T+1}\nv_lshlrev_b32 v{T+2}, 3, v{T}\nv_mov_b32 v{T+3}, {BIG}\nv_cndmask_b32 v{vStat}, v{T+3}, v{T+2}, vcc")
        a(f"v_lshlrev_b32 v{vL16}, 4, v0")
        a(f"v_mov_b32 v{vC1}, {f32(GC1)}")
        for t in range(9):
            a(f"buffer_load_dwordx2 {vr(RES + 2 * t, 2)}, v{vRes}, {X_}, 0 offen offset:{32 * t}")
        if self.o.touch:
            a(f"s_lshl_b32 {sT0}, {sI2}, 2\ns_add_u32 {sT0}, {sT0}, {sC}\ns_lshl_b32 {sT0}, {sT0}, 2\ns_add_u32 {sT0}, {sT0}, {sWave}\ns_mul_i32 {sT0}, {sT0}, 11")
            a(f"v_add_u32 v{T}, {sT0}, v0\nv_lshlrev_b32 v{T}, 7, v{T}\nv_mov_b32 v{T+1}, {BIG}\nv_cmp_gt_u32 vcc, 11, v0\nv_cndmask_b32 v{T}, v{T+1}, v{T}, vcc")
            a(f"buffer_load_dword v252, v{T}, {W2_}, 0 offen")
        a.wait_vm(xd)
        for ks in range(18):
            a(f"ds_read_b128 {vr(XR + 4 * ks, 4)}, v{vXr} offset:{1024 * ks}")
        a.wait_all(vm=False)
        a("s_barrier")
        emit_round_now(2)
        emit_round_now(3)
        self.stamp(1)
        a.tag = "B-ln"
        for k in range(4):
            a(f"v_mov_b32 v{T+k}, 0")
        a(f"s_mov_b32 {sT0}, 0x3f803f80")
        for r in range(72):
            a(f"v_dot2c_f32_bf16 v{T + (r & 1)}, {sT0}, v{XR + r}")
            a(f"v_dot2c_f32_bf16 v{T + 2 + (r & 1)}, v{XR + r}, v{XR + r}")
        a(f"v_add_f32 v{T}, v{T}, v{T+1}\nv_add_f32 v{T+2}, v{T+2}, v{T+3}")
        self.xgroup("v_add_f32", f"v{T}", f"v{T+4}")
        self.xgroup("v_add_f32", f"v{T+2}", f"v{T+4}")
        self.ln_scalars(f"v{T}", f"v{T+2}", f"v{T+4}", f"v{T+5}")
        for r in range(0, 72, 2):
            o1 = self.norm_ops(f"v{XR+r}", f"v{XR+r}", f"v{T}", f"v{T+2}", f"v{T+6}", f"v{T+7}")
            o2 = self.norm_ops(f"v{XR+r+1}", f"v{XR+r+1}", f"v{T}", f"v{T+2}", f"v{T+8}", f"v{T+9}")
            for x, y in zip(o1, o2):
                a(x)
                a(y)
        self.stamp(2)

        def gemm(step0, nsteps):
            L, NF, G = 7, 8, 3
            nfr = nsteps * 9
            rd_last = {}
            fill = []

            def read(f):
                st, t = step0 + f // 9, f % 9
                if t == 0 and st % 4 == 0:
                    rho = st // 4
                    a.wait_vm(rnd_last[rho])
                    a("s_barrier")
                    if 2 <= rho <= 6:
                        if rho == 2:
                            while fill:
                                fill.pop(0)
                            emit_round_now(4)
                        else:
                            fill.extend([(rho + 2, s_) for s_ in dma_round_ops(rho + 2)])
                slot = st % 16
                base = vAr + slot // 7
                off = (slot % 7) * 9216 + 32 * t
                b = FR + 4 * (f % NF)
                a(f"ds_read_b64_tr_b16 {vr(b, 2)}, v{base} offset:{off}")
                rd_last[f] = a(f"ds_read_b64_tr_b16 {vr(b + 2, 2)}, v{base} offset:{off + 4608}")

            for f in range(min(L, nfr)):
                read(f)
            for f in range(nfr):
                if f % G == 0:
                    a.wait_lg(rd_last[min(f + G - 1, nfr - 1)])
                ks, t = f // 9, f % 9
                b = FR + 4 * (f % NF)
                c = vr(ACC + 4 * t, 4)
                a(f"v_mfma_f32_16x16x32_bf16 {c}, {vr(b, 4)}, {vr(XR + 4 * ks, 4)}, {c if ks else 0}")
                if fill:
                    rho, s_ = fill.pop(0)
                    r = a(s_)
                    if r:
                        rnd_last[rho] = r
                    if s_.startswith("s_add_u32 m0") or s_.startswith(f"s_add_u32 {sF}"):
                        pass
                if f + L < nfr:
                    read(f + L)
            while fill:
                rho, s_ = fill.pop(0)
                r = a(s_)
                if r:
                    rnd_last[rho] = r

        a.tag = "B-g1"
        gemm(0, 18)
        self.stamp(3)
        a.tag = "B-e1"
        for t in range(9):
            g = GT + 8 * (t & 1)
            for s_ in self.gelu_ops([f"v{ACC + 4*t + k}" for k in range(4)], [f"v{g+4}", f"v{g+5}"], g, f"v{vC1}"):
                a(s_)
            if t == 0:
                a(f"s_mul_i32 {sT0}, {sC}, 4608\ns_add_u32 {sT0}, {sT0}, {sHS}\ns_add_u32 {sT1}, {sT0}, 4096")
            a(f"buffer_store_dwordx2 {vr(g + 4, 2)}, v{vSt}, {WS_}, {sT0 if t < 8 else sT1} offen offset:{512 * (t & 7)} sc1")
        self.publish(f"s_lshl_b32 {sT0}, {sI}, 12\ns_lshl_b32 {sT1}, {sTh}, 7\ns_add_u32 {sT0}, {sT0}, {sT1}\ns_lshl_b32 {sT1}, {sC}, 2\ns_add_u32 {sT0}, {sT0}, {sT1}\ns_add_u32 {sT0}, {sT0}, 128")
        self.stamp(4)
        if self.o.stop_after == "B1":
            a("s_branch L_end")
            return
        self.poll(f"s_lshl_b32 {sT0}, {sI}, 12\ns_lshl_b32 {sT1}, {sTh}, 7\ns_add_u32 {sT0}, {sT0}, {sT1}\ns_add_u32 {sT0}, {sT0}, 128", 4, 101, f"v{T}", f"v{T+1}")
        self.stamp(5)
        a.tag = "B-g2"
        for ks in range(18):
            if ks % 4 == 0:
                a(f"s_add_u32 {sT0}, {sHS}, {1024 * ks}")
            a(f"buffer_load_dwordx4 {vr(XR + 4 * ks, 4)}, v{vL16}, {WS_}, {sT0} offen offset:{1024 * (ks & 3)} sc1")
        gemm(18, 18)
        self.stamp(6)
        a.tag = "B-e2"
        a(f"s_lshl_b32 {sT0}, {sI2}, 1\ns_lshr_b32 {sT1}, {sWave}, 1\ns_add_u32 {sT0}, {sT0}, {sT1}\ns_mul_i32 {sT0}, {sT0}, 36")
        a(f"s_mul_i32 {sT1}, {sC}, 9\ns_add_u32 {sT0}, {sT0}, {sT1}\ns_lshl_b32 {sT0}, {sT0}, 10\ns_add_u32 {sT0}, {sT0}, {WS_X1}")
        for k in range(4):
            a(f"v_mov_b32 v{T+k}, 0")
        a(f"s_mov_b32 {sT2}, 0x3f803f80")
        for t in range(9):
            g = GT + 8 * (t & 1)
            c = ACC + 4 * t
            if self.o.mimic_hs:
                a(f"v_cvt_pk_bf16_f32 v{g}, v{c}, v{c+1}\nv_cvt_pk_bf16_f32 v{g+1}, v{c+2}, v{c+3}")
                a(f"v_lshlrev_b32 v{c}, 16, v{g}\nv_and_b32 v{c+1}, 0xffff0000, v{g}\nv_lshlrev_b32 v{c+2}, 16, v{g+1}\nv_and_b32 v{c+3}, 0xffff0000, v{g+1}")
            r = RES + 2 * t
            a(f"v_lshlrev_b32 v{g}, 16, v{r}\nv_and_b32 v{g+1}, 0xffff0000, v{r}\nv_lshlrev_b32 v{g+2}, 16, v{r+1}\nv_and_b32 v{g+3}, 0xffff0000, v{r+1}")
            for k in range(4):
                a(f"v_add_f32 v{g+k}, v{g+k}, v{c+k}")
            a(f"v_cvt_pk_bf16_f32 v{g+4}, v{g}, v{g+1}\nv_cvt_pk_bf16_f32 v{g+5}, v{g+2}, v{g+3}")
            if t and t % 4 == 0:
                a(f"s_add_u32 {sT0}, {sT0}, 4096")
            a(f"buffer_store_dwordx2 {vr(g + 4, 2)}, v{vSt2}, {WS_}, {sT0} offen offset:{1024 * (t & 3)} sc1")
            for k in range(2):
                a(f"v_dot2c_f32_bf16 v{T + k}, {sT2}, v{g+4+k}")
                a(f"v_dot2c_f32_bf16 v{T + 2 + k}, v{g+4+k}, v{g+4+k}")
        a(f"v_add_f32 v{T}, v{T}, v{T+1}\nv_add_f32 v{T+1}, v{T+2}, v{T+3}")
        self.xgroup("v_add_f32", f"v{T}", f"v{T+4}")
        self.xgroup("v_add_f32", f"v{T+1}", f"v{T+4}")
        a(f"s_lshl_b32 {sT0}, {sI2}, 2\ns_add_u32 {sT0}, {sT0}, {sC}\ns_lshl_b32 {sT0}, {sT0}, 2\ns_add_u32 {sT0}, {sT0}, {sWave}\ns_lshl_b32 {sT0}, {sT0}, 7\ns_add_u32 {sT0}, {sT0}, {WS_ST}")
        a(f"buffer_store_dwordx2 {vr(T, 2)}, v{vStat}, {WS_}, {sT0} offen sc1")

    def role_a(self):
        a = self
        a.tag = "A0"
        vWo, vXo, vHo, vXr, vHr, vGr = 1, 9, 11, 12, 13, 14
        AD0, AD1 = 16, 32
        ACC, HAC, BF, FR, T = 48, 168, 184, 208, 240
        XB, GATE = 98304, 153600
        sTok, sX0, sW0, sSo = sP[0], sP[1], sP[2], sP[3]
        a(f"s_lshl_b32 {sTok}, {sI}, 7\ns_lshl_b32 {sT0}, {sWave}, 5\ns_add_u32 {sTok}, {sTok}, {sT0}")
        a(f"s_movk_i32 {sT5}, 1152")
        a(f"v_lshrrev_b32 v{T}, 2, v0\nv_and_b32 v{T+1}, 3, v0")
        self.swz(f"v{T+2}", f"v{T}", f"v{T+1}", f"v{T+3}")
        a(f"v_add_u32 v{T+1}, {sTok}, v{T}\nv_mul_lo_u32 v{T+1}, v{T+1}, {sT5}\nv_add_u32 v{vXo}, v{T+1}, v{T+2}")
        a(f"v_add_u32 v{vXo+1}, {16 * 1152}, v{vXo}")
        a(f"s_lshl_b32 {sT0}, {sI}, 7\ns_sub_u32 {sT0}, {sT0}, 16\ns_lshr_b32 {sT1}, {sWave}, 1\ns_lshl_b32 {sT1}, {sT1}, 6")
        a(f"v_add_u32 v{T+1}, {sT0}, v{T}\nv_mul_lo_u32 v{T+1}, v{T+1}, {sT5}\nv_add_u32 v{T+1}, v{T+1}, v{T+2}\nv_add_u32 v{vHo}, {sT1}, v{T+1}")
        a(f"s_lshl_b32 {sX0}, {sWave}, 12\ns_add_u32 {sX0}, {sX0}, {XB}")
        a(f"s_lshl_b32 {sE}, {sT1}, 4\ns_add_u32 {sE}, {sE}, {XB + 16384}")
        a(f"s_lshl_b32 {sW0}, {sWave}, 13")
        a(f"v_lshrrev_b32 v{T}, 5, v0\nv_and_b32 v{T+1}, 31, v0")
        a(f"s_lshr_b32 {sT0}, {sWave}, 1\ns_lshl_b32 {sT0}, {sT0}, 5\ns_and_b32 {sT1}, {sWave}, 1\ns_lshl_b32 {sT1}, {sT1}, 2\ns_add_u32 {sT0}, {sT0}, {sT1}")
        a(f"s_mul_i32 {sT1}, {sSub}, 144\ns_movk_i32 {sT2}, 3456")
        a(f"v_add_u32 v{T+2}, {sT0}, v{T}\nv_mul_lo_u32 v{T+2}, v{T+2}, {sT2}\nv_add_u32 v{T+2}, {sT1}, v{T+2}")
        for t in range(8):
            a(f"v_add_u32 v{T+3}, {(2 * t) & 7}, v{T}\nv_lshlrev_b32 v{T+3}, 1, v{T+3}\nv_xor_b32 v{T+3}, v{T+1}, v{T+3}\nv_min_u32 v{T+3}, 26, v{T+3}")
            a(f"v_mul_u32_u24 v{T+4}, 57, v{T+3}\nv_lshrrev_b32 v{T+4}, 9, v{T+4}")
            a(f"v_mul_u32_u24 v{T+4}, {1152 - 144}, v{T+4}\nv_lshl_add_u32 v{T+4}, v{T+3}, 4, v{T+4}")
            kk = 8 * (t >> 1) + 2 * (t & 1)
            a(f"v_add_u32 v{T+4}, v{T+2}, v{T+4}\nv_add_u32 v{vWo+t}, {kk * 3456 - 1024 * (t & 3)}, v{T+4}")
        it_last = {}

        def dma_ops(it):
            s_ = it % 3
            L = [f"s_mov_b32 {sSo}, {128 * it}"]
            for u in range(4):
                L.append(f"s_add_u32 m0, {sX0}, {18432 * s_ + 1024 * u - 64 * (u & 1)}")
                L.append(f"buffer_load_dwordx4 v{vXo + (u >> 1)}, {X_}, {sSo} offen offset:{64 * (u & 1)} lds")
            L.append(f"s_add_u32 m0, {sE}, {18432 * s_}")
            L.append(f"buffer_load_dwordx4 v{vHo}, {X_}, {sSo} offen lds")
            L.append(f"s_mov_b32 {sSo}, {64 * 3456 * it}")
            for t in range(8):
                if t % 4 == 0:
                    L.append(f"s_add_u32 m0, {sW0}, {32768 * s_ + 1024 * t}")
                L.append(f"buffer_load_dwordx4 v{vWo+t}, {WQ_}, {sSo} offen offset:{1024 * (t & 3)} lds")
            return L

        def emit(ops, it):
            for s_ in ops:
                r = a(s_)
                if r:
                    it_last[it] = r

        emit(dma_ops(0), 0)
        a(f"v_lshlrev_b32 v{T}, 4, v0\ns_mov_b32 m0, {GATE}")
        a(f"buffer_load_dwordx4 v{T}, {GT_}, 0 offen lds")
        it_last[0] = a(f"buffer_load_dwordx4 v{T}, {GT_}, 0 offen offset:1024 lds")
        emit(dma_ops(1), 1)
        self.finish_nonce()
        a(f"v_and_b32 v{T}, 15, v0\nv_lshrrev_b32 v{T+1}, 4, v0")
        self.swz(f"v{T+2}", f"v{T}", f"v{T+1}", f"v{T+3}")
        a(f"v_lshl_add_u32 v{T+2}, v{T}, 6, v{T+2}\nv_add_u32 v{vXr}, {sX0}, v{T+2}\nv_add_u32 v{vHr}, {XB + 16384}, v{T+2}")
        a(f"v_lshlrev_b32 v{vGr}, 4, v{T+1}\nv_add_u32 v{vGr}, {GATE}, v{vGr}")
        a(f"v_lshrrev_b32 v{T+2}, 2, v{T}\nv_lshl_add_u32 v{T+2}, v{T+1}, 2, v{T+2}")
        a(f"v_and_b32 v{T+3}, 7, v{T+2}\nv_lshlrev_b32 v{T+3}, 1, v{T+3}")
        a(f"v_lshlrev_b32 v{T+2}, 9, v{T+2}")
        a(f"v_and_b32 v{T+4}, 3, v0")
        G0 = [0, 5, 9, 14]

        def addr(dst, sec, gexpr):
            a(gexpr)
            a(f"v_lshrrev_b32 v{T+6}, 1, v{T+5}\nv_add_u32 v{T+6}, {sec}, v{T+6}\nv_xor_b32 v{T+6}, v{T+6}, v{T+3}")
            a(f"v_and_b32 v{T+5}, 1, v{T+5}\nv_lshlrev_b32 v{T+5}, 3, v{T+5}\nv_lshl_add_u32 v{T+5}, v{T+6}, 4, v{T+5}")
            a(f"v_add_u32 v{AD0+dst}, v{T+2}, v{T+5}\nv_add_u32 v{AD1+dst}, 0x10000, v{AD0+dst}")

        for hh in range(4):
            addr(hh, 0, f"v_add_u32 v{T+5}, {G0[hh]}, v{T+4}")
            addr(4 + hh, 9, f"v_add_u32 v{T+5}, {G0[hh]}, v{T+4}")
            addr(9 + hh, 18, f"v_add_u32 v{T+5}, {G0[hh]}, v{T+4}")
        a(f"v_and_b32 v{T+7}, 1, v{T+4}\nv_mul_u32_u24 v{T+7}, 9, v{T+7}\nv_add_u32 v{T+7}, 4, v{T+7}")
        a(f"v_lshrrev_b32 v{T+8}, 1, v{T+4}\nv_mul_u32_u24 v{T+8}, 9, v{T+8}")
        addr(8, f"v{T+8}", f"v_mov_b32 v{T+5}, v{T+7}")
        addr(13, 18, f"v_mov_b32 v{T+5}, v{T+7}")
        a(f"s_mul_i32 {sT0}, {sWave}, 5\ns_lshr_b32 {sT1}, {sWave}, 1\ns_sub_u32 {sT0}, {sT0}, {sT1}")
        addr(14, 9, f"v_add_u32 v{T+5}, {sT0}, v{T+4}")
        addr(15, 18, f"v_add_u32 v{T+5}, {sT0}, v{T+4}")
        emit(dma_ops(2), 2)
        self.stamp(1)

        order = [0, 1, 2, 3, 4, 5, 6, 7, 8, 9, 10, 11, 12, 13, 14, 15, 16]
        nper = len(order)
        L, NF = 6, 8
        nfr = 18 * nper
        rd_last = {}
        fill = []
        touch_its = {1: (W3_, 0), 2: (W3_, 1), 3: (W4_, 0), 4: (W4_, 1), 5: (WO_, 2)} if self.o.touch else {}
        vTo = 15
        if self.o.touch:
            a(f"s_lshl_b32 {sT0}, {sI}, 3\ns_add_u32 {sT0}, {sT0}, {sSub}\ns_lshl_b32 {sT0}, {sT0}, 2\ns_add_u32 {sG}, {sT0}, {sWave}")
            a(f"v_cmp_gt_u32 {M4_}, 41, v0\nv_cmp_gt_u32 {M3_}, 11, v0")

        def bread(ks):
            it, kk = ks // 2, ks & 1
            s_ = it % 3
            b = BF + 12 * (ks & 1)
            a(f"ds_read_b128 {vr(b, 4)}, v{vXr} offset:{18432 * s_ + 1024 * kk}")
            a(f"ds_read_b128 {vr(b + 4, 4)}, v{vXr} offset:{18432 * s_ + 2048 + 1024 * kk}")
            return a(f"ds_read_b128 {vr(b + 8, 4)}, v{vHr} offset:{18432 * s_ + 1024 * kk}")

        def read(f):
            ks, y = f // nper, f % nper
            it, kk = ks // 2, ks & 1
            if y == 0:
                if kk == 0:
                    a.wait_vm(it_last[it])
                    a("s_barrier")
                    if it >= 1 and it + 2 <= 8:
                        pass
                bread(ks)
            ty = order[y]
            b = FR + 4 * (f % NF)
            if ty == 16:
                rd_last[f] = a(f"ds_read_b128 {vr(b, 4)}, v{vGr} offset:{64 * ks}")
            else:
                s_ = it % 3
                base = (AD1 if s_ == 2 else AD0) + ty
                off = (0 if s_ == 2 else 32768 * s_) + 16384 * kk
                a(f"ds_read_b64_tr_b16 {vr(b, 2)}, v{base} offset:{off}")
                rd_last[f] = a(f"ds_read_b64_tr_b16 {vr(b + 2, 2)}, v{base} offset:{off + 8192}")

        a.tag = "A-g"
        for f in range(L):
            read(f)
        for f in range(nfr):
            ks, y = f // nper, f % nper
            it, kk = ks // 2, ks & 1
            ty = order[y]
            if y % 2 == 0:
                a.wait_lg(rd_last[min(f + 1, nfr - 1)])
            b = vr(FR + 4 * (f % NF), 4)
            xb = BF + 12 * (ks & 1)
            X0, X1, XH = vr(xb, 4), vr(xb + 4, 4), vr(xb + 8, 4)

            def mm(c, w_is_a, x):
                cc = vr(c, 4)
                A_, B_ = (b, x) if w_is_a else (x, b)
                a(f"v_mfma_f32_16x16x32_bf16 {cc}, {A_}, {B_}, {cc if ks else 0}")
            if ty <= 8:
                mm(ACC + 8 * ty, True, X0)
                mm(ACC + 8 * ty + 4, True, X1)
                if ty == 8:
                    mm(HAC + 8, True, XH)
            elif ty <= 13:
                mm(ACC + 8 * ty, False, X0)
                mm(ACC + 8 * ty + 4, False, X1)
                if ty == 13:
                    mm(HAC + 12, False, XH)
            elif ty == 14:
                mm(HAC, True, XH)
            elif ty == 15:
                mm(HAC + 4, False, XH)
            else:
                mm(ACC + 8 * 14, True, X0)
                mm(ACC + 8 * 14 + 4, True, X1)
            if kk == 0 and y == 1 and it >= 1 and it + 2 <= 8:
                a("s_barrier")
                fill.extend([(it + 2, s_) for s_ in dma_ops(it + 2)])
                if it in touch_its:
                    srd, u = touch_its[it]
                    if u < 2:
                        fill.append((None, f"s_mul_i32 {sT0}, {sG}, 81\ns_add_u32 {sT0}, {sT0}, {41 * u}\nv_add_u32 v{T}, {sT0}, v0\nv_lshlrev_b32 v{T}, 7, v{T}\nv_mov_b32 v{T+1}, {BIG}\nv_cndmask_b32 v{vTo}, v{T+1}, v{T}, {M4_}"))
                    else:
                        fill.append((None, f"s_mul_i32 {sT0}, {sG}, 11\nv_add_u32 v{T}, {sT0}, v0\nv_lshlrev_b32 v{T}, 7, v{T}\nv_mov_b32 v{T+1}, {BIG}\nv_cndmask_b32 v{vTo}, v{T+1}, v{T}, {M3_}"))
                    fill.append((None, f"buffer_load_dword v252, v{vTo}, {srd}, 0 offen"))
            if fill:
                i2, s_ = fill.pop(0)
                r = a(s_)
                if r and i2 is not None:
                    it_last[i2] = r
            if f + L < nfr:
                read(f + L)
        assert not fill
        self.stamp(2)
        a.tag = "A-pack"
        a("s_barrier")
        KP, SEL, EXA = 16, 32, 40
        a(f"s_mov_b32 s84, 0xffff\ns_mov_b32 s85, 0\ns_mov_b32 s86, 0xffff0000\ns_mov_b32 s87, 0")

        def cvt2(dst, src):
            a(f"v_cvt_pk_bf16_f32 v{dst}, v{src}, v{src+1}\nv_cvt_pk_bf16_f32 v{dst+1}, v{src+2}, v{src+3}")

        a(f"v_lshlrev_b32 v{EXA}, 3, v0")
        a(f"s_lshl_b32 {sT0}, {sWave}, 9\nv_add_u32 v{EXA+1}, {sT0}, v{EXA}")
        a(f"s_mul_i32 {sT0}, {sWave}, 5120\nv_add_u32 v{EXA+2}, {sT0}, v{EXA}")
        cvt2(HAC, HAC)
        cvt2(HAC + 4, HAC + 4)
        cvt2(HAC + 8, HAC + 8)
        cvt2(HAC + 12, HAC + 12)
        a(f"v_mov_b32 v{HAC+10}, v{HAC+8}\nv_mov_b32 v{HAC+11}, v{HAC+9}")
        a(f"v_permlane32_swap_b32 v{HAC+8}, v{HAC+10}\nv_permlane32_swap_b32 v{HAC+9}, v{HAC+11}")
        a(f"ds_write_b64 v{EXA+1}, {vr(HAC, 2)}")
        a(f"ds_write_b64 v{EXA+1}, {vr(HAC + 4, 2)} offset:{5 * 512}")
        a(f"ds_write_b64 v{EXA}, {vr(HAC + 10, 2)} offset:{4 * 512}")
        a(f"ds_write_b64 v{EXA}, {vr(HAC + 12, 2)} offset:{9 * 512}")
        for t in (1, 0):
            c = ACC + 8 * 8 + 4 * t
            cvt2(c, c)
            a(f"v_mov_b32 v{c+2}, v{c}\nv_mov_b32 v{c+3}, v{c+1}")
            a(f"v_permlane32_swap_b32 v{c}, v{c+2}\nv_permlane32_swap_b32 v{c+1}, v{c+3}")
            for hh in range(4):
                k = ACC + 8 * (4 + hh) + 4 * t
                cvt2(k, k)
                a(f"v_mov_b32 v{k+2}, v{c+2}\nv_mov_b32 v{k+3}, v{c+3}")
                if t == 1:
                    a(f"ds_write_b64 v{EXA+2}, {vr(k, 2)} offset:{5120 + hh * 512}")
            if t == 1:
                a(f"ds_write_b64 v{EXA+2}, {vr(c + 2, 2)} offset:{5120 + 4 * 512}")
        for hh in range(5):
            v = ACC + 8 * (9 + hh)
            cvt2(v + 4, v + 4)
            a(f"ds_write_b64 v{EXA+2}, {vr(v + 4, 2)} offset:{5120 + (5 + hh) * 512}")
            a(f"v_cvt_pk_bf16_f32 v{v+3}, v{v+2}, v{v+3}\nv_cvt_pk_bf16_f32 v{v+2}, v{v}, v{v+1}")
        a.wait_all(vm=False)
        a("s_barrier")
        for hh in range(4):
            a(f"ds_read_b64 {vr(KP + 4 * hh, 2)}, v{EXA+2} offset:{hh * 512}")
            a(f"ds_read_b64 {vr(KP + 4 * hh + 2, 2)}, v{EXA+2} offset:{4 * 512}")
        for hh in range(5):
            a(f"ds_read_b64 {vr(ACC + 8 * (9 + hh), 2)}, v{EXA+2} offset:{(5 + hh) * 512}")
        for t in range(2):
            c = ACC + 8 * 8 + 4 * t
            for hh in range(4):
                qd = ACC + 8 * hh + 4 * t
                cvt2(qd, qd)
                m = M0_ if hh < 2 else M1_
                if hh & 1:
                    a(f"v_mov_b32 v{qd+2}, 0\nv_cndmask_b32 v{qd+3}, 0, v{c+1}, {m}")
                else:
                    a(f"v_cndmask_b32 v{qd+2}, 0, v{c}, {m}\nv_mov_b32 v{qd+3}, 0")
        vG = [ACC + 8 * 14, ACC + 8 * 14 + 4]
        for t in range(2):
            g = vG[t]
            self.bf16_round(f"v{g}", f"v{g}")
            a(f"v_mul_f32 v{g}, {f32(-LOG2E)}, v{g}\nv_exp_f32 v{g}, v{g}\nv_add_f32 v{g}, 1.0, v{g}\nv_rcp_f32 v{g}, v{g}")
            self.bf16_round(f"v{g}", f"v{g}")
            a(f"v_sub_f32 v{g+1}, 1.0, v{g}")
            self.bf16_round(f"v{g+1}", f"v{g+1}")
        a(f"v_and_b32 v{T}, 15, v0\nv_lshrrev_b32 v{T+1}, 4, v0\nv_and_b32 v{T+2}, 1, v0")
        a(f"v_lshl_add_u32 v{T+3}, v{T+1}, 2, v{T+2}\nv_add_u32 v{T+4}, 2, v{T+3}")
        a(f"v_cmp_eq_u32 {M2_}, 1, v{T+2}\nv_cmp_le_u32 {M3_}, v{T+3}, v{T}\nv_cmp_le_u32 {M4_}, v{T+4}, v{T}")
        a(f"v_mov_b32 v{T+5}, 0x0c0c0100\nv_mov_b32 v{T+6}, 0x01000c0c\nv_cndmask_b32 v{T+5}, v{T+5}, v{T+6}, {M2_}")
        a(f"v_mov_b32 v{T+6}, 0x0c0c0302\nv_mov_b32 v{T+7}, 0x03020c0c\nv_cndmask_b32 v{T+6}, v{T+6}, v{T+7}, {M2_}")
        a(f"v_mov_b32 v{T+7}, 0x0c0c0c0c")
        a(f"v_cndmask_b32 v{SEL}, v{T+5}, v{T+7}, {M3_}\nv_cndmask_b32 v{SEL+1}, v{T+6}, v{T+7}, {M4_}")
        a(f"v_cndmask_b32 v{SEL+2}, v{T+7}, v{T+5}, {M3_}\nv_cndmask_b32 v{SEL+3}, v{T+7}, v{T+6}, {M4_}")
        a(f"s_cmp_eq_u32 {sTok}, 0\ns_cselect_b32 {sT0}, 0xff800000, 0\nv_mov_b32 v{T+5}, {sT0}")
        a(f"v_cndmask_b32 v{SEL+4}, v{T+5}, 0, {M3_}\nv_cndmask_b32 v{SEL+5}, v{T+5}, 0, {M4_}")
        vO, vOx0, vOx1, vGo = EXA + 3, EXA + 4, EXA + 5, EXA + 6
        a(f"v_lshrrev_b32 v{T+2}, 1, v{T+1}\nv_and_b32 v{T+3}, 1, v{T+1}\nv_lshlrev_b32 v{T+4}, 4, v{T}")
        a(f"v_lshl_add_u32 v{T+4}, v{T+3}, 3, v{T+4}\nv_lshl_add_u32 v{vO}, v{T+2}, 9, v{T+4}")
        a(f"v_lshlrev_b32 v{T+2}, 3, v{T}\nv_mov_b32 v{T+3}, {BIG}")
        a(f"v_cndmask_b32 v{vOx0}, v{T+3}, v{T+2}, {M0_}\nv_cndmask_b32 v{vOx1}, v{T+3}, v{T+2}, {M1_}")
        sO0, sO1 = sP[4], sP[5]
        a(f"s_lshl_b32 {sT0}, {sI}, 4\ns_lshl_b32 {sT1}, {sSub}, 1\ns_add_u32 {sT0}, {sT0}, {sT1}\ns_lshl_b32 {sT0}, {sT0}, 2\ns_add_u32 {sT0}, {sT0}, {sWave}")
        a(f"s_mul_i32 {sO0}, {sT0}, 2304\ns_add_u32 {sO0}, {sO0}, {WS_O}\ns_add_u32 {sO1}, {sO0}, {4 * 2304}")
        a(f"v_mov_b32 v{T+8}, {f32(LOG2E * 18 ** -0.5)}")
        vSc = T + 8
        DD, PP, MI = 184, 216, 232
        self.stamp(3)
        a.tag = "A-att"
        for t in range(2):
            for hh in range(4):
                kprev = vr(KP + 4 * hh, 4) if t == 0 else vr(ACC + 8 * (4 + hh), 4)
                kcur = vr(ACC + 8 * (4 + hh) + 4 * t, 4)
                qd = vr(ACC + 8 * hh + 4 * t, 4)
                a(f"v_mfma_f32_16x16x32_bf16 {vr(DD + 8 * hh, 4)}, {kprev}, {qd}, 0")
                a(f"v_mfma_f32_16x16x32_bf16 {vr(DD + 8 * hh + 4, 4)}, {kcur}, {qd}, 0")
            streams = []
            for hh in range(4):
                p_, c_ = DD + 8 * hh, DD + 8 * hh + 4
                m = MI + 4 * hh
                u0, u1, x, y = f"v{m}", f"v{m+1}", f"v{m+2}", f"v{m+3}"
                b0, b1 = (f"v{SEL+4}", f"v{SEL+5}") if t == 0 else ("0", "0")
                P = PP + 4 * hh
                L_ = [f"v_cndmask_b32 {u0}, v{p_}, v{p_+1}, {M2_}", f"v_cndmask_b32 {x}, v{c_}, v{c_+1}, {M2_}",
                      f"v_cndmask_b32 {u1}, v{p_+2}, v{p_+3}, {M2_}", f"v_cndmask_b32 {y}, v{c_+2}, v{c_+3}, {M2_}",
                      f"v_cndmask_b32 {u0}, {u0}, {x}, {M3_}", f"v_cndmask_b32 {u1}, {u1}, {y}, {M4_}",
                      f"v_fma_f32 {u0}, {u0}, v{vSc}, {b0}", f"v_fma_f32 {u1}, {u1}, v{vSc}, {b1}",
                      f"v_max_f32 {x}, {u0}, {u1}",
                      f"v_mov_b32 {y}, {x}", f"v_permlane32_swap_b32 {x}, {y}", f"v_max_f32 {x}, {x}, {y}",
                      f"v_mov_b32 {y}, {x}", f"v_permlane16_swap_b32 {x}, {y}", f"v_max_f32 {x}, {x}, {y}",
                      f"v_sub_f32 {u0}, {u0}, {x}", f"v_sub_f32 {u1}, {u1}, {x}",
                      f"v_exp_f32 {u0}, {u0}", f"v_exp_f32 {u1}, {u1}",
                      f"v_add_f32 {x}, {u0}, {u1}",
                      f"v_mov_b32 {y}, {x}", f"v_permlane32_swap_b32 {x}, {y}", f"v_add_f32 {x}, {x}, {y}",
                      f"v_mov_b32 {y}, {x}", f"v_permlane16_swap_b32 {x}, {y}", f"v_add_f32 {x}, {x}, {y}",
                      f"v_rcp_f32 {x}, {x}",
                      f"v_mul_f32 {u0}, {u0}, {x}", f"v_mul_f32 {u1}, {u1}, {x}",
                      f"v_cvt_pk_bf16_f32 {x}, {u0}, {u1}"]
                L_ += [f"v_perm_b32 v{P+k}, {x}, {x}, v{SEL+k}" for k in range(4)]
                streams.append(L_)
            for step in zip(*streams):
                for s_ in step:
                    a(s_)
            for hh in range(4):
                P = vr(PP + 4 * hh, 4)
                a(f"v_mfma_f32_16x16x32_bf16 {vr(DD + 8 * hh, 4)}, {vr(ACC + 8 * (9 + hh) + 2 * t, 4)}, {P}, 0")
                a(f"v_mfma_f32_16x16x32_bf16 {vr(DD + 8 * hh + 4, 4)}, {vr(ACC + 8 * 13 + 2 * t, 4)}, {P}, 0")
            g = f"v{vG[t]}"
            for hh in range(4):
                o_ = DD + 8 * hh
                for k in range(4):
                    a(f"v_mul_f32 v{o_+k}, v{o_+k}, {g}")
                e = o_ + 4 + 2 * (hh & 1)
                a(f"v_mul_f32 v{e}, v{e}, {g}\nv_mul_f32 v{e+1}, v{e+1}, {g}")
                m = MI + 4 * hh
                cvt2(m, o_)
                a(f"v_cvt_pk_bf16_f32 v{MI + 4 * (hh & 2) + 2 + (hh & 1)}, v{e}, v{e+1}")
                a(f"buffer_store_dwordx2 {vr(m, 2)}, v{vO}, {WS_}, {sO0 if hh < 2 else sO1} offen offset:{1024 * (hh & 1) + 256 * t} sc1")
                if hh & 1:
                    a(f"buffer_store_dwordx2 {vr(MI + 4 * (hh & 2) + 2, 2)}, v{vOx0 if hh < 2 else vOx1}, {WS_}, {sO0 if hh < 2 else sO1} offen offset:{2048 + 128 * t} sc1")
            a(f"s_lshl_b32 {sT0}, {sTok}, 3\ns_add_u32 {sT0}, {sT0}, {WS_G + 128 * t}")
            a(f"s_cmp_eq_u32 {sSub}, 0\ns_cselect_b32 {sT0}, {sT0}, {BIG}")
            a(f"buffer_store_dwordx2 {vr(vG[t], 2)}, v{vOx0}, {WS_}, {sT0} offen sc1")

    def mlp(self):
        a = self
        a.tag = "M0"
        vW3, vW4, vS, vB8, vWO2 = 1, 7, 13, 14, 15
        vNat, vPerm, vX_, vSgl, vL16 = 16, 19, 22, 25, 26
        vR, vNB, vCc, vC1, T = 27, 28, 29, 30, 32
        H, ACC, XV = 40, 112, 176
        OQ = 36
        XA, FR, OA = 0, 144, 176
        sW3, sW3s, sW4, sB0, sB1, sB2, sWO, sWO2, sM6, sPart, sM8 = sP[0:11]
        sM3, sSo = sP[11], sP[12]
        a(f"v_bfe_u32 v{T}, v0, 2, 3\nv_lshrrev_b32 v{T+1}, 5, v0\nv_and_b32 v{T+2}, 3, v0")
        a(f"v_lshlrev_b32 v{T+1}, 6, v{T+1}\nv_lshl_add_u32 v{T+1}, v{T+2}, 4, v{T+1}")
        a(f"s_mul_i32 {sT0}, {sWave}, 48\nv_add_u32 v{T+3}, {sT0}, v{T}")
        a(f"v_mul_u32_u24 v{T+4}, 9216, v{T+3}\nv_add_u32 v{T+4}, v{T+4}, v{T+1}")
        a(f"v_mul_u32_u24 v{T+5}, 1152, v{T+3}\nv_add_u32 v{T+5}, v{T+5}, v{T+1}")
        for t in range(6):
            a(f"v_add_u32 v{vW3+t}, {8 * t * 9216 - 1024 * (t & 3)}, v{T+4}")
            a(f"v_add_u32 v{vW4+t}, {8 * t * 1152 - 1024 * (t & 3)}, v{T+5}")
        a(f"v_mul_u32_u24 v{T+4}, 1152, v{T}\nv_add_u32 v{vB8}, v{T+4}, v{T+1}")
        a(f"v_and_b32 v{T+4}, 3, v{T}\nv_add_u32 v{T+4}, 16, v{T+4}\nv_mul_u32_u24 v{T+4}, 1152, v{T+4}\nv_add_u32 v{vWO2}, v{T+4}, v{T+1}")
        a(f"v_lshrrev_b32 v{T+4}, 2, v0\nv_mul_u32_u24 v{T+4}, 9216, v{T+4}\nv_lshl_add_u32 v{vS}, v{T+2}, 4, v{T+4}")
        a(f"s_and_b32 {sT0}, {sJ}, 1")
        a(f"s_mul_i32 {sW3s}, {sJ}, 576\ns_lshl_b32 {sT1}, {sT0}, 6\ns_add_u32 {sW3}, {sW3s}, {sT1}")
        a(f"s_cmp_eq_u32 {sT0}, 0\ns_cselect_b32 {sT1}, 512, 0\ns_add_u32 {sW3s}, {sW3s}, {sT1}")
        a(f"s_mul_i32 {sT2}, {sJ}, 288\ns_lshl_b32 {sT1}, {sT0}, 5\ns_add_u32 {sT1}, {sT1}, {sT2}\ns_mul_i32 {sW4}, {sT1}, 1152")
        for t, sb in enumerate((sB0, sB1, sB2)):
            a(f"s_mul_i32 {sT1}, {sWave}, 24\ns_lshl_b32 {sT3}, {sT0}, 5\ns_add_u32 {sT1}, {sT1}, {sT3}\ns_add_u32 {sT1}, {sT1}, {8 * (24 + t)}")
            a(f"s_sub_u32 {sT3}, {sT1}, 288\ns_cmp_ge_u32 {sT1}, 288\ns_cselect_b32 {sT1}, {sT3}, {sT1}")
            a(f"s_add_u32 {sT1}, {sT1}, {sT2}\ns_mul_i32 {sb}, {sT1}, 1152")
            if t:
                a(f"s_sub_u32 {sb}, {sb}, {1024 * t}")
        a(f"s_mul_i32 {sT1}, {sJ}, 36\ns_mul_i32 {sWO2}, {sT1}, 1152\ns_lshl_b32 {sT3}, {sWave}, 3\ns_add_u32 {sT1}, {sT1}, {sT3}")
        a(f"s_lshr_b32 {sT3}, {sWave}, 1\ns_lshl_b32 {sT3}, {sT3}, 2\ns_add_u32 {sT1}, {sT1}, {sT3}\ns_mul_i32 {sWO}, {sT1}, 1152")
        a(f"s_mul_i32 {sM6}, {sWave}, 6144\ns_mul_i32 {sM3}, {sWave}, 3072\ns_lshl_b32 {sM8}, {sWave}, 10")
        a(f"v_bfe_u32 v{T}, v0, 2, 2\nv_bfe_u32 v{T+1}, v0, 4, 1\nv_lshrrev_b32 v{T+2}, 5, v0\nv_and_b32 v{T+3}, 3, v0")
        a(f"v_lshlrev_b32 v{T}, 6, v{T}\nv_lshl_add_u32 v{T}, v{T+1}, 5, v{T}\nv_lshl_add_u32 v{T}, v{T+3}, 3, v{T}")
        a(f"v_lshl_add_u32 v{vSgl}, v{T+2}, 9, v{T}")
        for g in range(3):
            a(f"v_add_u32 v{vX_+g}, {49152 * g}, v{T}")
            a(f"v_lshl_add_u32 v{vNat+g}, v{T+2}, 10, v{vX_+g}\nv_lshl_add_u32 v{vPerm+g}, v{T+2}, 8, v{vX_+g}")
        a(f"v_lshlrev_b32 v{vL16}, 4, v0\nv_mov_b32 v{vC1}, {f32(GC1)}")
        a(f"s_lshl_b32 {sT0}, {sI}, 4\ns_add_u32 {sT0}, {sT0}, {sJ}\ns_lshl_b32 {sT0}, {sT0}, 2\ns_add_u32 {sT0}, {sT0}, {sWave}")
        a(f"s_mul_i32 {sPart}, {sT0}, 36864\ns_add_u32 {sPart}, {sPart}, {WS_PART}\ns_mul_i32 {sD}, {sT0}, 2304\ns_add_u32 {sD}, {sD}, {WS_O}")

        slots = []
        for p in range(4):
            for u in range(3):
                slots.append(("w3", p, u))
        slots += [("sg", 0, 0), ("sg", 0, 1)]
        for P in range(9):
            slots += [("w4a", P, 0), ("w4b", P, 1)]
        NS = len(slots)

        def dma_ops(sg):
            kind, p, u = slots[sg]
            base = (sg % 6) * 24576
            L = []
            if kind in ("w3", "w4a"):
                if kind == "w3":
                    L.append(f"s_add_u32 {sSo}, {sW3}, {192 * u * 9216 + 128 * p}")
                    vo, srd = vW3, W3_
                else:
                    L.append(f"s_add_u32 {sSo}, {sW4}, {128 * p}")
                    vo, srd = vW4, W4_
                for t in range(6):
                    if t % 4 == 0:
                        L.append(f"s_add_u32 m0, {sM6}, {base + 1024 * t}")
                    L.append(f"buffer_load_dwordx4 v{vo+t}, {srd}, {sSo} offen offset:{1024 * (t & 3)} lds")
            elif kind == "sg":
                n = 5 if u == 0 else 4
                L.append(f"s_mul_i32 {sSo}, {sWave}, {16 * n * 9216}")
                L.append(f"s_add_u32 {sSo}, {sSo}, {sW3s}")
                L.append(f"s_add_u32 {sSo}, {sSo}, {320 * u * 9216}")
                L.append(f"s_mul_i32 {sA}, {sWave}, {1024 * n}")
                for t in range(n):
                    L.append(f"s_add_u32 m0, {sA}, {base + 1024 * t}")
                    L.append(f"buffer_load_dwordx4 v{vS}, {W3_}, {sSo} offen lds")
                    if t + 1 < n:
                        L.append(f"s_add_u32 {sSo}, {sSo}, {16 * 9216}")
            else:
                L.append(f"s_add_u32 m0, {sM3}, {base}")
                for t, sb in enumerate((sB0, sB1, sB2)):
                    L.append(f"s_add_u32 {sSo}, {sb}, {128 * p}")
                    L.append(f"buffer_load_dwordx4 v{vB8}, {W4_}, {sSo} offen offset:{1024 * t} lds")
                L.append(f"s_add_u32 m0, {sM8}, {base + 12288}")
                L.append(f"s_add_u32 {sSo}, {sWO}, {128 * p}")
                L.append(f"buffer_load_dwordx4 v{vB8}, {WO_}, {sSo} offen lds")
                L.append(f"s_mov_b32 m0, {base + 16384}")
                L.append(f"s_add_u32 {sSo}, {sWO2}, {128 * p}")
                L.append(f"buffer_load_dwordx4 v{vWO2}, {WO_}, {sSo} offen lds")
            return L

        sl_last = {}

        def emit_now(sg):
            for s_ in dma_ops(sg):
                r = a(s_)
                if r:
                    sl_last[sg] = r

        for sg in range(6):
            emit_now(sg)
        self.stamp(8)
        self.poll(f"s_lshl_b32 {sT0}, {sI}, 12\ns_add_u32 {sT0}, {sT0}, 384", 16, 102, f"v{T}", f"v{T+1}")
        self.stamp(9)
        a.tag = "M-x"
        ST = ACC
        a(f"v_and_b32 v{T}, 31, v0\nv_lshlrev_b32 v{T+1}, 3, v{T}")
        a(f"s_lshl_b32 {sT0}, {sI}, 12\ns_lshr_b32 {sT1}, {sWave}, 1\ns_lshl_b32 {sT1}, {sT1}, 11\ns_add_u32 {sT0}, {sT0}, {sT1}")
        a(f"s_and_b32 {sT1}, {sWave}, 1\ns_lshl_b32 {sT1}, {sT1}, 8\ns_add_u32 {sT0}, {sT0}, {sT1}\ns_add_u32 {sT0}, {sT0}, {WS_ST}")
        for c in range(4):
            a(f"buffer_load_dwordx2 {vr(ST + 2 * c, 2)}, v{T+1}, {WS_}, {sT0} offen offset:{512 * c} sc1")
        a(f"s_lshl_b32 {sT0}, {sI}, 2\ns_add_u32 {sT0}, {sT0}, {sWave}\ns_lshl_b32 {sT1}, {sT0}, 8\ns_add_u32 {sT1}, {sT1}, {WS_G}")
        a(f"buffer_load_dword v{vCc}, v{T+1}, {WS_}, {sT1} offen offset:4 sc1")
        a(f"s_mul_i32 {sT0}, {sT0}, 36864\ns_add_u32 {sT0}, {sT0}, {WS_X1}")
        NV = 19
        RAW = H
        for ks in range(36):
            if ks and ks % 4 == 0:
                a(f"s_add_u32 {sT0}, {sT0}, 4096")
            dst = XV + 4 * ks if ks < NV else RAW + 4 * (ks - NV)
            a(f"buffer_load_dwordx4 {vr(dst, 4)}, v{vL16}, {WS_}, {sT0} offen offset:{1024 * (ks & 3)} sc1")
        a(f"buffer_load_dwordx4 {ar(OA, 4)}, v{vL16}, {WS_}, {sD} offen sc1")
        a(f"buffer_load_dwordx4 {ar(OA + 4, 4)}, v{vL16}, {WS_}, {sD} offen offset:1024 sc1")
        a(f"v_mov_b32 v{T+2}, {BIG}\nv_cmp_gt_u32 vcc, 32, v0\nv_cndmask_b32 v{T+1}, v{T+2}, v{T+1}, vcc")
        a(f"buffer_load_dwordx2 {vr(OQ, 2)}, v{T+1}, {WS_}, {sD} offen offset:2048 sc1")
        a(f"v_mov_b32 v{OQ+2}, 0\nv_mov_b32 v{OQ+3}, 0")
        a(f"v_add_f32 v{vR}, v{ST}, v{ST+2}\nv_add_f32 v{vNB}, v{ST+1}, v{ST+3}")
        a(f"v_add_f32 v{ST+4}, v{ST+4}, v{ST+6}\nv_add_f32 v{ST+5}, v{ST+5}, v{ST+7}")
        a(f"v_add_f32 v{vR}, v{vR}, v{ST+4}\nv_add_f32 v{vNB}, v{vNB}, v{ST+5}")
        self.ln_scalars(f"v{vR}", f"v{vNB}", f"v{T}", f"v{T+1}")
        a(f"v_rcp_f32 v{vCc}, v{vCc}\nv_min_f32 v{vCc}, {f32(1e30)}, v{vCc}")
        for r in range(0, 144, 2):
            ops = []
            for z in range(2):
                rr = r + z
                if rr < 4 * NV:
                    ops.append(self.norm_ops(f"v{XV+rr}", f"v{XV+rr}", f"v{vR}", f"v{vNB}", f"v{T+2*z}", f"v{T+2*z+1}") + [None])
                else:
                    src = f"v{RAW + rr - 4 * NV}"
                    ops.append(self.norm_ops(src, src, f"v{vR}", f"v{vNB}", f"v{T+2*z}", f"v{T+2*z+1}") + [f"v_accvgpr_write_b32 a{XA + rr - 4 * NV}, {src}"])
            for x, y in zip(*ops):
                if x:
                    a(x)
                if y:
                    a(y)
        self.stamp(10)

        def xop(ks):
            return vr(XV + 4 * ks, 4) if ks < NV else ar(XA + 4 * (ks - NV), 4)

        frs = []
        for sg, (kind, p, u) in enumerate(slots):
            reg = (sg % 6) // 2
            lo = (sg & 1) * 24576
            if kind == "w3":
                acc = ACC + 32 * (p & 1)
                for k in range(12):
                    for t in range(2):
                        frs.append((sg, vNat + reg, lo + 2048 * k + 512 * t, 256, acc + 16 * t, xop(12 * u + k), u == 0 and k == 0))
            elif kind == "sg":
                for k in range(20 if u == 0 else 16):
                    frs.append((sg, vSgl, lo + 1024 * k, 256, ACC, xop(20 * u + k), u == 0 and k == 0))
            elif kind == "w4a":
                acc = ACC + 32 * ((p + 1) & 1)
                for k in range(12):
                    for t in range(2):
                        frs.append((sg, vPerm + reg, 2048 * k + 512 * t, 1024, acc + 16 * t, vr(H + 4 * k, 4), k == 0))
            else:
                acc = ACC + 32 * ((p + 1) & 1)
                for k in range(2):
                    for t in range(2):
                        frs.append((sg, vNat + reg, 36864 + 2048 * k + 512 * t, 256, acc + 16 * t, ar(OA + 4 * k, 4), False))
                for t in range(2):
                    frs.append((sg, vX_ + reg, 40960 + 512 * t, 0, acc + 16 * t, vr(OQ, 4), False))
                for k in range(12, 18):
                    for t in range(2):
                        frs.append((sg, vPerm + reg, 2048 * k + 512 * t, 1024, acc + 16 * t, vr(H + 4 * k, 4), False))
        nfr = len(frs)
        last_of = {}
        for f, fr in enumerate(frs):
            kind, p, u = slots[fr[0]]
            last_of[("g1", p) if kind == "w3" else ("sg", 0) if kind == "sg" else ("g2", p)] = f
        avail = {}
        GTMP = T
        for p in range(4):
            acc = ACC + 32 * (p & 1)
            ops = []
            for g in range(8):
                src = [f"v{acc + 4 * g + k}" for k in range(4)]
                hb = H + 16 * p + 2 * g
                ops += self.gelu_ops(src, [f"v{hb}", f"v{hb+1}"], GTMP, f"v{vC1}", f"v{vCc}")
            nxt = last_of[("g1", p + 1)] if p < 3 else last_of[("sg", 0)]
            avail[last_of[("g1", p)]] = (ops, nxt - 1)
        ops = []
        for g in range(4):
            src = [f"v{ACC + 4 * g + k}" for k in range(4)]
            hb = H + 64 + 2 * g
            ops += self.gelu_ops(src, [f"v{hb}", f"v{hb+1}"], GTMP, f"v{vC1}", f"v{vCc}")
        avail[last_of[("sg", 0)]] = (ops, last_of[("g2", 0)] - 5)
        for P in range(9):
            acc = ACC + 32 * ((P + 1) & 1)
            ops = [f"s_add_u32 {sB}, {sPart}, {4096 * P}"]
            for g in range(4):
                q = XV + 4 * g
                ops += [f"v_cvt_pk_bf16_f32 v{q+k}, v{acc + 8*g + 2*k}, v{acc + 8*g + 2*k + 1}" for k in range(4)]
                ops.append(f"buffer_store_dwordx4 {vr(q, 4)}, v{vL16}, {WS_}, {sB} offen offset:{1024 * g} sc1")
            avail[last_of[("g2", P)]] = (ops, last_of[("g2", P)] + 24)

        L, NF, G = 7, 8, 4
        rd_last = {}
        dmaq = []
        vq = []
        seen = set()

        def read(f):
            sg, reg, off, d2 = frs[f][:4]
            if sg not in seen:
                seen.add(sg)
                a.wait_vm(sl_last[sg])
                a("s_barrier")
                if sg >= 2 and sg + 4 < NS:
                    dmaq.extend([(sg + 4, s_) for s_ in dma_ops(sg + 4)])
            b = FR + 4 * (f % NF)
            a(f"ds_read_b64_tr_b16 {ar(b, 2)}, v{reg} offset:{off}")
            rd_last[f] = a(f"ds_read_b64_tr_b16 {ar(b + 2, 2)}, v{reg} offset:{off + d2}")

        a.tag = "M-main"
        for f in range(L):
            read(f)
        delay = []
        for f in range(nfr):
            if f % G == 0:
                a.wait_lg(rd_last[min(f + G - 1, nfr - 1)])
            sg, reg, off, d2, acc, bop, first = frs[f]
            c = vr(acc, 16)
            a(f"v_mfma_f32_32x32x16_bf16 {c}, {ar(FR + 4 * (f % NF), 4)}, {bop}, {0 if first else c}")
            if f + L < nfr:
                read(f + L)
            if dmaq:
                for _ in range(2 if dmaq[0][1].startswith("s_") else 1):
                    if dmaq:
                        s4, s_ = dmaq.pop(0)
                        r = a(s_)
                        if r:
                            sl_last[s4] = r
            if f - 2 in avail:
                ops, dl = avail[f - 2]
                vq.append([list(ops), dl])
            if vq:
                ops, dl = vq[0]
                left = max(1, dl - f)
                n = -(-len(ops) // left)
                for _ in range(n):
                    if ops:
                        a(ops.pop(0))
                if not ops:
                    vq.pop(0)
            if f == last_of[("sg", 0)]:
                self.stamp(11)
        for s_ in avail[nfr - 1][0]:
            a(s_)
        assert not vq and not dmaq
        self.stamp(12)

    def reduce(self):
        a = self
        a.tag = "R"
        T, SEL, vLd, vRs, vGo, vOut = 1, 8, 12, 13, 14, 15
        BUF, ACC, RX, OM, TM = 16, 176, 200, 212, 216
        self.publish(f"s_lshl_b32 {sT0}, {sI}, 12\ns_lshl_b32 {sT1}, {sJ}, 2\ns_add_u32 {sT0}, {sT0}, {sT1}\ns_add_u32 {sT0}, {sT0}, 512")
        self.stamp(13)
        sBase, sX, sTok, sHu = sP[0], sP[1], sP[2], sP[3:8]
        a(f"v_and_b32 v{T}, 15, v0\nv_lshrrev_b32 v{T+1}, 4, v0")
        a(f"v_lshrrev_b32 v{T+2}, 3, v{T}\nv_and_b32 v{T+3}, 3, v{T}\nv_lshl_add_u32 v{T+2}, v{T+2}, 2, v{T+3}")
        a(f"v_bfe_u32 v{T+3}, v{T}, 2, 1\nv_and_b32 v{T+4}, 1, v{T+1}\nv_cmp_eq_u32 vcc, v{T+3}, v{T+4}")
        a(f"v_and_b32 v{T+3}, 1, v{T+2}\nv_lshlrev_b32 v{T+3}, 4, v{T+3}\nv_mov_b32 v{T+5}, 0x3f80\nv_lshlrev_b32 v{T+3}, v{T+3}, v{T+5}")
        a(f"v_cndmask_b32 v{T+3}, 0, v{T+3}, vcc\nv_lshrrev_b32 v{T+2}, 1, v{T+2}")
        for r in range(4):
            a(f"v_cmp_eq_u32 vcc, {r}, v{T+2}\nv_cndmask_b32 v{SEL+r}, 0, v{T+3}, vcc")
        a(f"s_and_b32 {sT0}, {sWave}, 1\ns_lshl_b32 {sT0}, {sT0}, 4\nv_add_u32 v{T}, {sT0}, v{T}")
        a(f"v_lshrrev_b32 v{T+2}, 1, v{T+1}\nv_lshlrev_b32 v{T+5}, 4, v{T}")
        a(f"v_mul_u32_u24 v{T+3}, 147456, v{T+2}\nv_lshl_add_u32 v{T+3}, v{T+4}, 9, v{T+3}\nv_add_u32 v{vLd}, v{T+3}, v{T+5}")
        a(f"v_lshl_add_u32 v{T+3}, v{T+2}, 9, v{T+5}\nv_lshl_add_u32 v{vRs}, v{T+4}, 3, v{T+3}")
        a(f"v_lshlrev_b32 v{vGo}, 3, v{T}")
        a(f"s_lshr_b32 {sT0}, {sJ}, 2\ns_lshl_b32 {sT1}, {sI}, 2\ns_add_u32 {sT1}, {sT1}, {sT0}")
        a(f"s_lshl_b32 {sTok}, {sT1}, 5\nv_add_u32 v{T}, {sTok}, v{T}\nv_mul_u32_u24 v{T}, 1152, v{T}\nv_lshl_add_u32 v{vOut}, v{T+1}, 3, v{T}")
        a(f"s_mul_i32 {sX}, {sT1}, 36864\ns_add_u32 {sX}, {sX}, {WS_X1}")
        a(f"s_mul_i32 {sBase}, {sI}, {16 * 147456}\ns_mul_i32 {sT0}, {sT0}, 36864\ns_add_u32 {sBase}, {sBase}, {sT0}\ns_add_u32 {sBase}, {sBase}, {WS_PART}")
        a(f"s_and_b32 {sT0}, {sJ}, 3\ns_mul_i32 {sT0}, {sT0}, 3\ns_cmp_ge_u32 {sWave}, 2")
        for t, (x0, x1) in enumerate(((0, 1), (2, 12), (13, 14), (24, 25), (26, 0x40000))):
            a(f"s_cselect_b32 {sHu[t]}, {x1}, {x0}")
        for t in range(5):
            a(f"s_add_u32 {sHu[t]}, {sHu[t]}, {sT0}")
        for t in range(5):
            a(f"s_lshl_b32 {sT0}, {sHu[t]}, 10\ns_add_u32 {sT0}, {sT0}, {sX}")
            a(f"buffer_load_dwordx2 {vr(RX + 2 * t, 2)}, v{vRs}, {WS_}, {sT0} offen sc1")
        a(f"s_lshl_b32 {sT0}, {sTok}, 3\ns_add_u32 {sT0}, {sT0}, {WS_G}")
        a(f"buffer_load_dword v{OM}, v{vGo}, {WS_}, {sT0} offen offset:4 sc1")
        self.poll(f"s_lshl_b32 {sT0}, {sI}, 12\ns_add_u32 {sT0}, {sT0}, 512", 16, 103, f"v{T}", f"v{T+1}")
        self.stamp(14)
        for t in range(5):
            a(f"s_lshl_b32 {sT0}, {sHu[t]}, 10\ns_add_u32 {sT0}, {sT0}, {sBase}")
            for pp in range(8):
                a(f"buffer_load_dwordx4 {vr(BUF + 32 * t + 4 * pp, 4)}, v{vLd}, {WS_}, {sT0} offen sc1")
                if pp < 7:
                    a(f"s_add_u32 {sT0}, {sT0}, {2 * 147456}")
        a(f"s_lshl_b32 {sT0}, {sI}, 12\ns_cmp_eq_u32 {sJ}, 0\ns_cselect_b32 {sT0}, {sT0}, {BIG}")
        a(f"v_mov_b32 v255, {sNonce}")
        a(f"buffer_store_dword v255, {self.vFlag}, {WS_}, {sT0} offen sc1")
        for t in range(5):
            c = vr(ACC + 4 * t, 4)
            for pp in range(8):
                a(f"v_mfma_f32_16x16x32_bf16 {c}, {vr(SEL, 4)}, {vr(BUF + 32 * t + 4 * pp, 4)}, {c if pp else 0}")
            if t:
                self.red_out(t - 1, ACC, RX, OM, TM, vOut, sHu)
        self.red_out(4, ACC, RX, OM, TM, vOut, sHu)
        self.stamp(15)

    def red_out(self, t, ACC, RX, OM, TM, vOut, sHu):
        a = self
        c, r = ACC + 4 * t, RX + 2 * t
        a(f"v_lshlrev_b32 v{TM}, 16, v{r}\nv_and_b32 v{TM+1}, 0xffff0000, v{r}\nv_lshlrev_b32 v{TM+2}, 16, v{r+1}\nv_and_b32 v{TM+3}, 0xffff0000, v{r+1}")
        for k in range(4):
            a(f"v_fma_f32 v{TM+k}, v{TM+k}, v{OM}, v{c+k}")
        a(f"v_cvt_pk_bf16_f32 v{TM+4+2*(t&1)}, v{TM}, v{TM+1}\nv_cvt_pk_bf16_f32 v{TM+5+2*(t&1)}, v{TM+2}, v{TM+3}")
        a(f"s_lshl_b32 {sT0}, {sHu[t]}, 5")
        a(f"buffer_store_dwordx2 {vr(TM + 4 + 2 * (t & 1), 2)}, v{vOut}, {OUT_}, {sT0} offen")

    def build(self):
        a = self
        a.raw(header(NAME, 256, 256, LDS_BYTES))
        self.prologue()
        snap = a.snapshot()
        stop = self.o.stop_after
        self.stamp(0)
        self.role_a()
        a("s_branch L_join")
        a.label("L_roleB")
        a.restore(snap)
        self.stamp(0)
        self.role_b()
        a.label("L_join")
        a.tag = "join"
        if stop != "B1":
            self.publish(f"s_lshl_b32 {sT0}, {sI}, 12\ns_lshl_b32 {sT1}, {sJ}, 2\ns_add_u32 {sT0}, {sT0}, {sT1}\ns_add_u32 {sT0}, {sT0}, 384")
            self.stamp(7)
            if stop != "front":
                self.mlp()
                if stop != "mlp":
                    self.reduce()
        a("s_waitcnt vmcnt(0)")
        a.label("L_end")
        a("s_endpgm")
        a.raw(descriptor(NAME))
        return a.text()


def make(**kw):
    o = Opt()
    for k, v in kw.items():
        setattr(o, k, v)
    g = Gen(o)
    t = g.build()
    return t, g


if __name__ == "__main__":
    t, g = make()
    out = sys.argv[1] if len(sys.argv) > 1 else "k.s"
    open(out, "w").write(t)
    import collections
    c = collections.Counter()
    for tag, n, line in g.nop_sites:
        c[tag] += n
    print("instructions", g.count, "bytes of text", len(t), "nops", dict(c), "autowaits", g.autowaits)
```

```python
import sys, gen as G
ref = open("gated_mix__sliding_local_dilated__mixer_s_mlp__prompt.s.ref").read()
hdr = "".join(l + "\n" for l in ref.split("\n") if l.startswith("; ") and ("Kernarg" in l or "offset" in l))
def write(path, **kw):
    t, g = G.make(**kw)
    open(path, "w").write(hdr + "; generated by a Python script (one persistent launch: front phases, fused MLP, reduction)\n" + t)
if __name__ == "__main__":
    write(sys.argv[1] if len(sys.argv) > 1 else "gated_mix__sliding_local_dilated__mixer_s_mlp__prompt.s")
```
